```python
import torch

def _softmax(x, axis=-1):
    return torch.softmax(x, dim=axis)
def _gelu(x):
    return torch.nn.functional.gelu(x, approximate="tanh")
def _silu(x):
    return torch.nn.functional.silu(x)
def _sigmoid(x):
    return torch.sigmoid(x)
def _layernorm(x, axis=-1, eps=1e-5):
    m = x.mean(dim=axis, keepdim=True)
    v = x.var(dim=axis, keepdim=True, unbiased=False)
    return (x - m) / torch.sqrt(v + eps)
def _scatter_add(tgt, idx, src, axis=0):
    return tgt.clone().index_add_(axis, idx, src)
def _segment_sum(src, seg, n):
    out = torch.zeros((n,) + src.shape[1:], dtype=src.dtype)
    return out.index_add_(0, seg, src)
def _pad(x, pw):
    flat = tuple(v for pair in reversed(pw) for v in pair)
    return torch.nn.functional.pad(x, flat)

kernel_name = 'recurrent_scan__spectral_gfnet__mixer_channel_mlp__prompt'

def setup_inputs():

    _w = (lambda a: (lambda t: t.to(torch.bfloat16) if t.is_floating_point() else t)(torch.as_tensor(a)))
    def _A_setup():
        B, S, D = 1, 2048, 512
        Df = D // 2 + 1
        return {
            "x": _w((lambda *s: torch.randn(*s, dtype=torch.bfloat16) * 0.05)(B, S, D)),
            "w_r": _w((lambda *s: torch.randn(*s, dtype=torch.bfloat16) * 0.8)(S, Df) * 0.02),
            "w_i": _w((lambda *s: torch.randn(*s, dtype=torch.bfloat16) * 0.8)(S, Df) * 0.02),
        }
    _A_in = _A_setup()

    def _B_setup():
        B, S, D, F = 1, 2048, 512, 1792
        return {
            "x": _w((lambda *s: torch.randn(*s, dtype=torch.bfloat16) * 0.05)(B, S, D)),
            "w1": _w((lambda *s: torch.randn(*s, dtype=torch.bfloat16) * 0.8)(D, F) * (D ** -0.5)),
            "b1": _w((lambda *s: torch.randn(*s, dtype=torch.bfloat16) * 0.8)(F)),
            "w2": _w((lambda *s: torch.randn(*s, dtype=torch.bfloat16) * 0.8)(F, D) * (F ** -0.5)),
            "b2": _w((lambda *s: torch.randn(*s, dtype=torch.bfloat16) * 0.2)(D)),
        }
    _B_in = _B_setup()

    return {
        "A_x": _A_in["x"],
        "A_w_r": _A_in["w_r"],
        "A_w_i": _A_in["w_i"],
        "B_x": _B_in["x"],
        "B_w1": _B_in["w1"],
        "B_b1": _B_in["b1"],
        "B_w2": _B_in["w2"],
        "B_b2": _B_in["b2"],
    }

def reference(A_x, A_w_r, A_w_i, B_x, B_w1, B_b1, B_w2, B_b2):
    def _A_ref(x, w_r, w_i):
        B, S, D = x.shape
        X = (lambda x, axes=(-2,-1): torch.fft.rfft2(x.float(), dim=axes))(x, axes=(-2, -1))
        W = w_r + 1j * w_i
        X = X * W
        y = (lambda x, s, axes=(-2,-1): torch.fft.irfft2(x, s=s, dim=axes).to(torch.bfloat16))(X, (S, D), axes=(-2, -1))
        return y

    def _B_ref(x, w1, b1, w2, b2):
        y = _layernorm(x, axis=-1)
        h = _gelu(torch.einsum("bsd,df->bsf", y, w1) + b1)
        return torch.einsum("bsf,fd->bsd", h, w2) + b2

    x = A_x
    xn = _layernorm(x, axis=-1)
    s = _A_ref(xn, A_w_r, A_w_i)
    g = _silu(_B_ref(xn, B_w1, B_b1, B_w2, B_b2))
    return x + s * g
```

```python
import re

TRANS = ("v_exp_f32", "v_log_f32", "v_rcp_f32", "v_rsq_f32", "v_sqrt_f32", "v_sin_f32", "v_cos_f32")

def regs_of(op):
    op = op.strip().lstrip("-").strip("|")
    m = re.fullmatch(r"([vas])\[(\d+):(\d+)\]", op)
    if m: return {(m.group(1), k) for k in range(int(m.group(2)), int(m.group(3)) + 1)}
    m = re.fullmatch(r"([vas])(\d+)", op)
    if m: return {(m.group(1), int(m.group(2)))}
    if op == "vcc": return {("s", "vcc")}
    if op == "m0": return {("s", "m0")}
    if op == "exec": return {("s", "exec")}
    return set()

class Ins:
    def __init__(self, text, tag=None, cond=False):
        self.text = text.strip(); self.tag = tag; self.cond = cond
        t = self.text.split(";")[0].strip()
        self.label = t.endswith(":")
        parts = t.split(None, 1)
        self.op = parts[0] if parts else ""
        rest = parts[1] if len(parts) > 1 else ""
        ops = [o.strip() for o in rest.split(",")] if rest else []
        ops2 = []
        for o in ops:
            ops2.append(o.split()[0] if o.split() else o)
        self.ops = ops2
        self.mods = rest
        op = self.op
        self.mfma = op.startswith("v_mfma")
        self.valu = op.startswith("v_") and not self.mfma
        self.trans = any(op.startswith(x) for x in TRANS)
        self.dot = op.startswith("v_dot")
        self.vmem = op.startswith("buffer_") or op.startswith("global_")
        self.ds = op.startswith("ds_")
        self.smem = op.startswith("s_load") or op.startswith("s_memtime") or op.startswith("s_memrealtime")
        self.dpp = "row_" in rest or "quad_perm" in rest
        self.perm = op.startswith("v_permlane")
        self.rl = op.startswith("v_readfirstlane") or op.startswith("v_readlane")
        self.lds = self.vmem and re.search(r"\blds\b", rest) is not None
        R = [regs_of(o) for o in ops2]
        self.w = set(); self.r = set()
        if self.mfma:
            self.w = R[0]; self.A = R[1]; self.B = R[2]; self.C = R[3]; self.r = R[1] | R[2] | R[3]
            self.passes = 8 if "32x32" in op else 4
        elif self.valu:
            self.w = set(R[0]) if R else set()
            for x in R[1:]: self.r |= x
            if self.perm: self.w |= R[1]; self.r |= R[0]
            if "fmac" in op or "dot2c" in op or self.dpp: self.r |= R[0]
            if op.startswith("v_cndmask") and len(R) == 3: self.r |= {("s", "vcc")}
        elif self.vmem:
            if "load" in op and not self.lds:
                self.w = R[0]
                for x in R[1:]: self.r |= x
            else:
                for x in R: self.r |= x
            self.wide_data = set()
            if "store" in op and ("x4" in op or "x3" in op):
                self.wide_data = R[0] if op.startswith("buffer_") else R[1]
            if self.lds: self.r |= {("s", "m0")}
        elif self.ds:
            if "read" in op or "permute" in op:
                self.w = R[0]
                for x in R[1:]: self.r |= x
            else:
                for x in R: self.r |= x
        elif op.startswith("s_") and R and not op.startswith("s_cmp") and not op.startswith("s_bitcmp"):
            self.w = R[0]
            for x in R[1:]: self.r |= x
    def states(self):
        if self.label or not self.op or self.op.startswith(".") or self.op.startswith(";"): return 0
        if self.op == "s_nop": return int(self.ops[0]) + 1
        return 1

def need(p, c):
    n = 0
    pv = {x for x in p.w if x[0] in "va"}
    ps = {x for x in p.w if x[0] == "s"}
    if p.mfma:
        big = 12 if p.passes == 8 else 8
        if c.mfma:
            if pv & (c.A | c.B): n = max(n, big)
            if pv & c.C and not (pv == c.C and p.passes == c.passes): n = max(n, big - 2)
            if pv & c.w and not (pv & c.C): n = max(n, big)
        elif c.valu or c.vmem or c.ds:
            if pv & (c.r | c.w): n = max(n, big)
        if (c.valu) and (p.C & c.w): n = max(n, 7 if p.passes == 8 else 3)
    elif p.valu:
        if c.mfma and pv & c.r: n = max(n, 3 if p.dot else 2)
        if p.trans and c.valu and pv & c.r: n = max(n, 1)
        if c.rl and pv & c.r: n = max(n, 1)
        if (c.dpp or c.perm) and pv & c.r: n = max(n, 2)
        if c.vmem and ps & c.r: n = max(n, 5)
        if c.valu and ps & c.r: n = max(n, 2)
        if p.dot and (c.valu or c.vmem or c.ds) and pv & (c.r | c.w):
            same_c = c.dot and c.op == p.op and not (pv & (regs_of(c.ops[1]) | regs_of(c.ops[2])))
            if not same_c: n = max(n, 3)
    elif p.vmem:
        if p.wide_data and (p.wide_data & c.w): n = max(n, 2)
    elif p.op.startswith("s_") and ("s", "m0") in ps and c.vmem and c.lds:
        n = max(n, 1)
    return n

class Asm:
    def __init__(self):
        self.ins = []; self.uid = 0; self.cond = False
    def __call__(self, s, tag=None):
        for l in s.split("\n"):
            if l.strip(): self.ins.append(Ins(l, tag, self.cond))
    def label(self, name): self.ins.append(Ins(name + ":"))
    def newlabel(self, base):
        self.uid += 1; return f"{base}_{self.uid}"
    def wait_vm(self, *tags): self.ins.append(("vm", tags))
    def wait_lg(self, *tags): self.ins.append(("lg", tags))
    def take(self):
        r = self.ins; self.ins = []; return r
    def put(self, lst): self.ins.extend(lst)
    def finalize(self):
        out = []
        for idx, it in enumerate(self.ins):
            if isinstance(it, tuple):
                kind, tags = it
                cnt = 0; found = set(); n = None
                for p in reversed(self.ins[:idx]):
                    if isinstance(p, tuple): continue
                    is_k = p.vmem if kind == "vm" else (p.ds or p.smem)
                    if not is_k: continue
                    if p.tag in tags:
                        n = cnt; break
                    if kind == "lg" and p.smem: n = 0; break
                    if not p.cond: cnt += 1
                assert n is not None, f"wait on unknown tag {tags}"
                if kind == "vm": out.append(Ins(f"s_waitcnt vmcnt({min(n, 63)})"))
                else: out.append(Ins(f"s_waitcnt lgkmcnt({min(n, 15)})"))
            else: out.append(it)
        fin = []
        nn = 0
        for c in out:
            if c.states() and c.op != "s_nop":
                dist = 0; req = 0
                for p in reversed(fin):
                    if dist >= 12: break
                    if p.states():
                        req = max(req, need(p, c) - dist)
                        dist += p.states()
                if req > 0:
                    fin.append(Ins(f"s_nop {req - 1}")); nn += req
            fin.append(c)
        self.nops = nn
        return "\n".join((i.text if i.label else "    " + i.text) for i in fin) + "\n"

def interleave(main, fill, every=None, is_slot=lambda i: not isinstance(i, tuple) and i.mfma, per=1, skip=0):
    out = []; k = 0; s = 0
    for it in main:
        out.append(it)
        if is_slot(it):
            s += 1
            if s > skip and (every is None or (s - skip - 1) % every == 0):
                for _ in range(per):
                    if k < len(fill):
                        out.extend(fill[k]); k += 1
    for f in fill[k:]: out.extend(f)
    return out

class Regs:
    def __init__(self, kind, n, start=0):
        self.kind = kind; self.free = set(range(start, n)); self.hi = start
    def alloc(self, n=1, align=None):
        align = align or (1 if n == 1 else 2)
        b = 0
        while True:
            if b + n > 512: raise RuntimeError(f"out of {self.kind} registers")
            if all((b + k) in self.free for k in range(n)): break
            b += align
        for k in range(n): self.free.discard(b + k)
        self.hi = max(self.hi, b + n)
        return Rng(self.kind, b, n)
    def release(self, *rs):
        for r in rs:
            for k in range(r.n):
                assert (r.b + k) not in self.free
                self.free.add(r.b + k)

class Rng:
    def __init__(self, kind, b, n): self.kind = kind; self.b = b; self.n = n
    def __str__(self): return f"{self.kind}{self.b}" if self.n == 1 else f"{self.kind}[{self.b}:{self.b+self.n-1}]"
    def __getitem__(self, k):
        if isinstance(k, slice):
            assert k.stop <= self.n
            return Rng(self.kind, self.b + k.start, k.stop - k.start)
        assert k < self.n
        return Rng(self.kind, self.b + k, 1)
    def sub(self, off, n):
        assert off + n <= self.n
        return Rng(self.kind, self.b + off, n)
```

```python
import sys, struct, math
sys.path.insert(0, "gen")
from asm2 import *

NAME = "recurrent_scan__spectral_gfnet__mixer_channel_mlp__prompt_kernel"
WS_NONCE, WS_FX, WS_FY, WS_FH, WS_FP = 0, 0x1000, 0x2000, 0x4000, 0x6000
WS_STATS, WS_STAMP = 0x10000, 0x20000
WS_X, WS_WT, WS_Y, WS_H, WS_P, WS_END = 0x100000, 0x300000, 0x500000, 0x800000, 0x1000000, 0x1800000
L_F1, L_CS, L_EX, L_YB, L_W2A, L_SB, L_BN = 0x20000, 0x22000, 0x20000, 0x22000, 0x24000, 0x18000, 0x1C000
LDS_BYTES = 0x28000
OOB = 0x7F000000
SPIN = 1 << 16

def fl(x): return "0x%08x" % struct.unpack("<I", struct.pack("<f", x))[0]

class K:
    def __init__(self, stamps=False):
        self.a = Asm(); self.V = Regs("v", 256, 1); self.A = Regs("a", 256); self.S = Regs("s", 100, 3)
        self.stamps = stamps; self.ns = 0
    def stamp(self, name):
        if not self.stamps: return
        r = self.sST.sub(2 * self.ns, 2); self.names.append(name); self.ns += 1
        self.a(f"s_memtime {r}\ns_waitcnt lgkmcnt(0)")

    def sincos(self, arg, dc, ds):
        a = self.a
        if dc is not None: a(f"v_cos_f32 {dc}, {arg}")
        if ds is not None: a(f"v_sin_f32 {ds}, {arg}")
    def cmul(self, re, im, c, s, ore, oim, conj, bc=None):
        m2 = "" if bc is None else (" op_sel_hi:[1,0]" if bc == 0 else " op_sel:[0,1]")
        m3 = "" if bc is None else (" op_sel_hi:[1,0,1]" if bc == 0 else " op_sel:[0,1,0]")
        ng = " neg_lo:[1,0,0] neg_hi:[1,0,0]"
        return [f"v_pk_mul_f32 {ore}, {re}, {c}{m2}", f"v_pk_mul_f32 {oim}, {im}, {c}{m2}",
                f"v_pk_fma_f32 {ore}, {im}, {s}, {ore}{m3}{'' if conj else ng}",
                f"v_pk_fma_f32 {oim}, {re}, {s}, {oim}{m3}{ng if conj else ''}"]
    def staged(self, lists):
        for k in range(max(len(l) for l in lists)):
            for l in lists:
                if k < len(l): self.a(l[k])
    def poll(self, vaddr, soff, n):
        a = self.a; t = self.V.alloc(4); L = a.newlabel("POLL"); D = a.newlabel("PDONE")
        a(f"s_mov_b32 {self.sCnt}, {SPIN}")
        a.label(L)
        a(f"buffer_load_dwordx4 {t}, {vaddr}, {self.rWS}, {soff} offen sc1\ns_waitcnt vmcnt(0)")
        a(f"v_xor_b32 {t[0]}, {self.sNonce}, {t[0]}\nv_xor_b32 {t[1]}, {self.sNonce}, {t[1]}")
        a(f"v_xor_b32 {t[2]}, {self.sNonce}, {t[2]}\nv_xor_b32 {t[3]}, {self.sNonce}, {t[3]}")
        a(f"v_or_b32 {t[0]}, {t[0]}, {t[1]}\nv_or3_b32 {t[0]}, {t[0]}, {t[2]}, {t[3]}")
        a(f"v_cmp_ne_u32 vcc, 0, {t[0]}\ns_sub_u32 {self.sCnt}, {self.sCnt}, 1")
        a(f"s_cbranch_scc1 {D}\ns_cbranch_vccnz {L}")
        a.label(D)
        self.V.release(t)
    def flag(self, soff):
        self.a(f"buffer_store_dword {self.vNonce}, {self.vL0}, {self.rWS}, {soff} offen sc1", "flag")

    def build(self):
        a, V, A, S = self.a, self.V, self.A, self.S
        srd = lambda: S.alloc(4, 4)
        rX, rWR, rWI, rW1, rW2, rB1, rB2, rOUT, rWS = [srd() for _ in range(9)]
        self.rWS = rWS
        if self.stamps: self.sST = S.alloc(28, 2); self.names = []
        sW, sQ, sC, sI, sE, sT, sJJ, sNonce, sCnt, sRot, t0, t1, t2, t3 = [S.alloc() for _ in range(14)]
        self.sNonce, self.sCnt = sNonce, sCnt
        sPC = S.alloc(2, 2)
        a("s_cmp_ge_u32 s2, 256\ns_cbranch_scc1 END")
        self.stamp("start")
        if self.stamps: sRT = S.alloc(2, 2); a(f"s_memrealtime {sRT}")
        for r, off in ((rWS, 80), (rX, 0), (rWR, 8), (rWI, 16), (rW1, 32), (rW2, 48), (rB1, 40), (rB2, 56), (rOUT, 64)):
            a(f"s_load_dwordx2 {r.sub(0,2)}, s[0:1], {off}")
        vT = V.alloc(); vPF = V.alloc()
        a(f"s_getpc_b64 {sPC}\nv_lshlrev_b32 {vT}, 7, v0\nv_min_u32 {vT}, CODE_SPAN, {vT}\nglobal_load_dword {vPF}, {vT}, {sPC}", "pf")
        for r, n in ((rX, 2097152), (rWR, 2048*514), (rWI, 2048*514), (rW1, 512*3584), (rW2, 1792*1024),
                     (rB1, 3584), (rB2, 1024), (rOUT, 2097152), (rWS, WS_END)):
            a(f"s_mov_b32 {r[2]}, {n}\ns_mov_b32 {r[3]}, 0x00020000")
        vL, vN, vH, vG, vM = [V.alloc() for _ in range(5)]
        a(f"v_lshrrev_b32 {vT}, 6, v0\nv_and_b32 {vL}, 63, v0\nv_readfirstlane_b32 {sW}, {vT}")
        a(f"v_and_b32 {vN}, 31, v0\nv_lshrrev_b32 {vH}, 5, {vL}\nv_lshrrev_b32 {vG}, 4, {vL}\nv_and_b32 {vM}, 15, v0")
        a(f"s_and_b32 {sE}, s2, 7\ns_lshr_b32 {sT}, s2, 3\ns_and_b32 {sQ}, {sE}, 3\ns_and_b32 {sC}, {sT}, 3")
        a(f"s_lshr_b32 {t0}, {sT}, 2\ns_and_b32 {sI}, {sE}, 4\ns_lshl_b32 {sI}, {sI}, 1\ns_add_u32 {sI}, {sI}, {t0}")
        a(f"s_lshl_b32 {sJJ}, {sQ}, 2\ns_add_u32 {sJJ}, {sJJ}, {sC}")
        a(f"s_lshl_b32 {sRot}, {sC}, 1\ns_add_u32 {sRot}, {sRot}, {t0}")
        vL16 = V.alloc(); a(f"v_lshlrev_b32 {vL16}, 4, {vL}")
        vL0 = V.alloc(); self.vL0 = vL0
        a(f"v_cmp_eq_u32 vcc, 0, {vL}\nv_mov_b32 {vT}, {OOB}\nv_cndmask_b32 {vL0}, {vT}, {vL}, vcc")
        vX8a = V.alloc(); X8 = V.alloc(8)
        a(f"v_lshlrev_b32 {vX8a}, 15, {vH}\nv_lshl_add_u32 {vX8a}, {vN}, 4, {vX8a}")
        sRow8 = S.alloc()
        a(f"s_lshl_b32 {t0}, {sE}, 3\ns_lshl_b32 {t1}, {sW}, 1\ns_add_u32 {t0}, {t0}, {t1}\ns_lshl_b32 {t0}, {t0}, 5\ns_add_u32 {sRow8}, {t0}, {sT}")
        a(f"s_lshl_b32 {t0}, {sRow8}, 10")
        a("s_waitcnt lgkmcnt(0)")
        a(f"s_load_dword {sNonce}, {rWS.sub(0,2)}, {WS_NONCE}")
        a(f"buffer_load_dwordx4 {X8.sub(0,4)}, {vX8a}, {rX}, {t0} offen", "x8")
        a(f"buffer_load_dwordx4 {X8.sub(4,4)}, {vX8a}, {rX}, {t0} offen offset:512", "x8")
        V.release(vX8a)
        WL = V.alloc(16); vT2 = V.alloc()
        a(f"v_lshlrev_b32 {vT2}, 1, v0")
        a(f"s_and_b32 {t0}, s2, 63\ns_lshr_b32 {t1}, s2, 6\ns_lshl_b32 {t1}, {t1}, 8\ns_add_u32 {t0}, {t0}, {t1}\ns_mul_i32 {t0}, {t0}, 514")
        for T in range(2):
            for r in range(4):
                a(f"s_add_u32 {t1}, {t0}, {(1024*T + 64*r) * 514}")
                a(f"buffer_load_ushort {WL[8*T+r]}, {vT2}, {rWR}, {t1} offen offset:2", "wl")
                a(f"buffer_load_ushort {WL[8*T+4+r]}, {vT2}, {rWI}, {t1} offen offset:2", "wl")
        V.release(vT2)
        vX = V.alloc(4, 1); vW1 = V.alloc(4, 1); vW2 = V.alloc(4, 1)
        u0, u1 = V.alloc(), V.alloc()
        a(f"v_lshrrev_b32 {u0}, 3, {vL}\nv_and_b32 {u0}, 3, {u0}\nv_lshl_add_u32 {u0}, {vH}, 5, {u0}\nv_lshlrev_b32 {u0}, 10, {u0}")
        a(f"v_and_b32 {u1}, 7, {vL}\nv_xor_b32 {u1}, {u1}, {vG}\nv_lshl_add_u32 {vX[0]}, {u1}, 4, {u0}")
        a(f"v_xor_b32 {vX[1]}, 64, {vX[0]}\nv_add_u32 {vX[2]}, {2*3072}, {vX[0]}\nv_add_u32 {vX[3]}, {3*3072}, {vX[1]}\nv_add_u32 {vX[1]}, 3072, {vX[1]}")
        a(f"v_lshlrev_b32 {u0}, 2, {vG}\nv_xor_b32 {u0}, {u0}, {vM}")
        a(f"v_lshlrev_b32 {u1}, 4, {u0}\nv_lshl_add_u32 {vW2[0]}, {vG}, 10, {u1}")
        a(f"v_mul_u32_u24 {vW1[0]}, 3584, {vG}\nv_add_u32 {vW1[0]}, {vW1[0]}, {u1}")
        a(f"s_cmp_eq_u32 {sC}, 3\ns_cselect_b32 {t0}, 8, 16\nv_cmp_gt_u32 vcc, {t0}, {u0}\nv_mov_b32 {u1}, {OOB}\nv_cndmask_b32 {vW1[0]}, {u1}, {vW1[0]}, vcc")
        for k in range(1, 4):
            a(f"v_add_u32 {vW1[k]}, {k*(4*3584-1024)}, {vW1[0]}\nv_add_u32 {vW2[k]}, {k*3072}, {vW2[0]}")
        sXb, sW1b, sW2b, sM0 = [S.alloc() for _ in range(4)]
        a(f"s_lshr_b32 {t0}, {sW}, 1\ns_lshl_b32 {t0}, {t0}, 6\ns_and_b32 {t1}, {sW}, 1\ns_lshl_b32 {t1}, {t1}, 4\ns_add_u32 {t0}, {t0}, {t1}")
        sRow0 = S.alloc()
        a(f"s_lshl_b32 {t1}, {sI}, 7\ns_add_u32 {sRow0}, {t0}, {t1}\ns_lshl_b32 {sXb}, {sRow0}, 10")
        a(f"s_mul_i32 {t0}, {sW}, {16*3584}\ns_mul_i32 {t1}, {sQ}, 896\ns_add_u32 {t0}, {t0}, {t1}\ns_lshl_b32 {t1}, {sC}, 8\ns_add_u32 {sW1b}, {t0}, {t1}")
        a(f"s_mul_i32 {t0}, {sQ}, {448*1024}\ns_add_u32 {sW2b}, {t0}, {t1}")
        a(f"s_lshl_b32 {sM0}, {sW}, 12")
        def dma_chunk(n):
            g = []
            slot = n & 3
            pre = Asm()
            pre(f"s_add_u32 {t2}, {sRot}, {n}\ns_and_b32 {t2}, {t2}, 7\ns_mul_i32 {t3}, {t2}, {64*3584}\ns_add_u32 {t3}, {t3}, {sW1b}")
            pre(f"s_lshl_b32 {t2}, {t2}, 7\ns_add_u32 m0, {sM0}, {slot*32768}\ns_add_u32 {t2}, {t2}, {sXb}")
            for k in range(4):
                pre(f"buffer_load_dwordx4 {vX[k]}, {rX}, {t2} offen offset:{1024*k} lds", f"c{n}")
                if k == 3: pre(f"s_add_u32 m0, {sM0}, {slot*32768+16384}")
                g.append(pre.take())
            for k in range(4):
                pre(f"buffer_load_dwordx4 {vW1[k]}, {rW1}, {t3} offen offset:{1024*k} lds", f"c{n}")
                g.append(pre.take())
            return g
        def dma_w2(u):
            g = []; pre = Asm()
            base = L_W2A if u == 0 else (u - 1) * 16384
            pre(f"s_lshl_b32 {t2}, {sC}, 3\ns_add_u32 {t2}, {t2}, {4*u}\ns_sub_u32 {t3}, {t2}, 28\ns_cmp_ge_u32 {t2}, 28\ns_cselect_b32 {t2}, {t3}, {t2}")
            pre(f"s_add_u32 {t2}, {t2}, {sW}\ns_lshl_b32 {t2}, {t2}, 14\ns_add_u32 m0, {sM0}, {base}\ns_add_u32 {t2}, {t2}, {sW2b}")
            for k in range(4):
                pre(f"buffer_load_dwordx4 {vW2[k]}, {rW2}, {t2} offen offset:{1024*k} lds", "w2")
                g.append(pre.take())
            return g
        flat = lambda gs: [x for g in gs for x in g]
        a.put(flat(dma_chunk(0)))
        self.stamp("dma0")
        fM, fG4 = V.alloc(), V.alloc()
        a(f"v_cvt_f32_u32 {fM}, {vM}\nv_lshlrev_b32 {u0}, 2, {vG}\nv_cvt_f32_u32 {fG4}, {u0}")
        C32, S32, N32 = [[V.alloc(4), V.alloc(4)] for _ in range(3)]
        tc, ts = V.alloc(8), V.alloc(8)
        def table(step, idxs, a0):
            for j, ix in enumerate(idxs): a(f"v_fmamk_f32 {ts[j]}, {step}, {fl(ix)}, {a0}")
            for j in range(len(idxs)): self.sincos(ts[j], tc[j], ts[j])
        a(f"v_mul_f32 {u0}, {fl(1/32)}, {fM}\nv_mul_f32 {u1}, {u0}, {fG4}")
        table(u0, [0, 1, 2, 3, 16, 17, 18, 19], u1)
        for j in range(4):
            a(f"v_cvt_pk_bf16_f32 {C32[0][j]}, {tc[2*j]}, {tc[2*j+1]}\nv_cvt_pk_bf16_f32 {S32[0][j]}, {ts[2*j]}, {ts[2*j+1]}")
        for j in range(4):
            a(f"v_xor_b32 {N32[0][j]}, 0x80008000, {S32[0][j]}\nv_xor_b32 {C32[1][j]}, 0x80000000, {C32[0][j]}")
            a(f"v_xor_b32 {S32[1][j]}, 0x80000000, {S32[0][j]}\nv_xor_b32 {N32[1][j]}, 0x00008000, {S32[0][j]}")
        sOdd = S.alloc(); a(f"s_lshl_b32 {sOdd}, {sW}, 31")
        C1, N1 = V.alloc(4), V.alloc(4)
        for j in range(4): a(f"v_xor_b32 {C1[j]}, {sOdd}, {C32[0][j]}\nv_xor_b32 {N1[j]}, {sOdd}, {N32[0][j]}")
        vKK = V.alloc(); T1c, T1s = V.alloc(4), V.alloc(4)
        a(f"s_and_b32 {t0}, {sW}, 1\ns_lshl_b32 {t0}, {t0}, 4\ns_add_u32 {t1}, {t0}, 31\nv_add_u32 {vKK}, {t1}, {vM}\nv_and_b32 {vKK}, 31, {vKK}")
        a(f"v_add_u32 {u0}, 1, {vKK}\nv_cvt_f32_u32 {u0}, {u0}\nv_mul_f32 {u0}, {fl(1/512)}, {u0}\nv_mul_f32 {u1}, {u0}, {fG4}")
        for r in range(4): a(f"v_fmamk_f32 {T1s[r]}, {u0}, {fl(r)}, {u1}")
        for r in range(4): self.sincos(T1s[r], T1c[r], T1s[r])
        B1c = V.alloc(4)
        a(f"v_lshrrev_b32 {u0}, 1, {vM}\nv_cvt_f32_u32 {u0}, {u0}\nv_mul_f32 {u0}, {fl(1/16)}, {u0}")
        a(f"v_and_b32 {u1}, 1, {vM}\nv_cvt_f32_u32 {u1}, {u1}\nv_mul_f32 {u1}, {fl(0.25)}, {u1}\nv_fmac_f32 {u1}, {u0}, {fG4}")
        table(u0, [0, 1, 2, 3], u1)
        a(f"v_cvt_pk_bf16_f32 {B1c[0]}, {tc[0]}, {tc[1]}\nv_cvt_pk_bf16_f32 {B1c[1]}, {tc[2]}, {tc[3]}")
        a(f"v_cvt_pk_bf16_f32 {B1c[2]}, {ts[0]}, {ts[1]}\nv_cvt_pk_bf16_f32 {B1c[3]}, {ts[2]}, {ts[3]}")
        a.put(flat(dma_chunk(1)))
        ACC = V.alloc(64)
        F = ACC.sub(0, 16); sm = ACC.sub(16, 2); sv = ACC.sub(18, 2); st = ACC.sub(20, 2)
        a("s_waitcnt lgkmcnt(0)")
        a(f"s_mul_i32 {sNonce}, {sNonce}, 1664525\ns_add_u32 {sNonce}, {sNonce}, 1013904223")
        vNonce = V.alloc(); self.vNonce = vNonce
        a(f"v_mov_b32 {vNonce}, {sNonce}")
        a.wait_vm("x8")
        self.stamp("x8")
        for j in range(8): a(f"v_lshlrev_b32 {F[2*j]}, 16, {X8[j]}\nv_and_b32 {F[2*j+1]}, 0xffff0000, {X8[j]}")
        def allsum(p):
            a(f"v_add_f32 {p[0]}, {p[0]}, {p[1]}")
            for sh in (8, 4, 2, 1): a(f"v_add_f32_dpp {p[0]}, {p[0]}, {p[0]} row_ror:{sh} row_mask:0xf bank_mask:0xf")
            a(f"v_mov_b32 {p[1]}, {p[0]}\nv_permlane16_swap_b32 {p[0]}, {p[1]}\nv_add_f32 {p[0]}, {p[0]}, {p[1]}")
        a(f"v_pk_add_f32 {sm}, {F.sub(0,2)}, {F.sub(2,2)}\nv_pk_add_f32 {sv}, {F.sub(4,2)}, {F.sub(6,2)}")
        for j in (4, 6): a(f"v_pk_add_f32 {sm}, {sm}, {F.sub(2*j,2)}\nv_pk_add_f32 {sv}, {sv}, {F.sub(2*j+2,2)}")
        a(f"v_pk_add_f32 {sm}, {sm}, {sv}")
        allsum(sm)
        a(f"v_mul_f32 {st[0]}, {fl(1/512)}, {sm[0]}")
        for j in range(8): a(f"v_pk_add_f32 {F.sub(2*j,2)}, {F.sub(2*j,2)}, {st} op_sel_hi:[1,0] neg_lo:[0,1] neg_hi:[0,1]")
        a(f"v_pk_mul_f32 {sm}, {F.sub(0,2)}, {F.sub(0,2)}\nv_pk_mul_f32 {sv}, {F.sub(2,2)}, {F.sub(2,2)}")
        for j in (2, 4, 6): a(f"v_pk_fma_f32 {sm}, {F.sub(2*j,2)}, {F.sub(2*j,2)}, {sm}\nv_pk_fma_f32 {sv}, {F.sub(2*j+2,2)}, {F.sub(2*j+2,2)}, {sv}")
        a(f"v_pk_add_f32 {sv}, {sm}, {sv}")
        allsum(sv)
        eps = 1e-5
        a(f"v_mov_b32 {sm[0]}, {fl(eps)}\nv_mov_b32 {sm[1]}, {fl(eps*eps)}")
        a(f"v_fmamk_f32 {sm[0]}, {sv[0]}, {fl(1/512)}, {sm[0]}\nv_fmamk_f32 {sm[1]}, {sv[0]}, {fl((1+eps)/512)}, {sm[1]}")
        a(f"v_rsq_f32 {sm[0]}, {sm[0]}\nv_sqrt_f32 {st[1]}, {sm[1]}")
        for j in range(8): a(f"v_pk_mul_f32 {F.sub(2*j,2)}, {F.sub(2*j,2)}, {sm} op_sel_hi:[1,0]")
        for j in range(8): a(f"v_cvt_pk_bf16_f32 {X8[j]}, {F[2*j]}, {F[2*j+1]}")
        a(f"s_lshl_b32 {t0}, {sW}, 11\ns_add_u32 {t0}, {t0}, {L_F1}\nv_lshlrev_b32 {u0}, 10, {vH}\nv_lshl_add_u32 {u0}, {vN}, 4, {u0}\nv_add_u32 {u0}, {t0}, {u0}")
        a(f"ds_write_b128 {u0}, {X8.sub(0,4)}\nds_write_b128 {u0}, {X8.sub(4,4)} offset:512", "f1w")
        a(f"v_cmp_eq_u32 vcc, 0, {vN}\nv_lshlrev_b32 {u1}, 8, {vH}\nv_mov_b32 {vT}, {OOB}\nv_cndmask_b32 {u1}, {vT}, {u1}, vcc")
        a(f"s_lshl_b32 {t0}, {sRow8}, 3\ns_add_u32 {t0}, {t0}, {WS_STATS}")
        a(f"buffer_store_dwordx2 {st}, {u1}, {rWS}, {t0} offen sc1", "xs")
        a.wait_lg("f1w"); a("s_barrier")
        FA = A.alloc(16)
        a(f"s_lshr_b32 {t0}, {sW}, 1\ns_lshl_b32 {t0}, {t0}, 12\ns_add_u32 {t0}, {t0}, {L_F1}\nv_lshlrev_b32 {u0}, 3, {vL}\nv_add_u32 {u0}, {t0}, {u0}")
        for r in range(4):
            for x in range(2): a(f"ds_read_b64_tr_b16 {FA.sub(4*r+2*x,2)}, {u0} offset:{1024*r+512*x}", f"f1r{r}")
        RE, IM, OR_, OI = ACC.sub(0, 16), ACC.sub(16, 16), ACC.sub(32, 16), ACC.sub(48, 16)
        for r in range(4):
            a.wait_lg(f"f1r{r}")
            a(f"v_mfma_f32_16x16x32_bf16 {RE.sub(4*r,4)}, {FA.sub(4*r,4)}, {C1}, 0")
            a(f"v_mfma_f32_16x16x32_bf16 {IM.sub(4*r,4)}, {FA.sub(4*r,4)}, {N1}, 0")
        a.wait_vm("wl")
        WP = V.alloc(8)
        for j in range(8): a(f"v_lshl_or_b32 {WP[j]}, {WL[2*j+1]}, 16, {WL[2*j]}")
        a(f"v_lshlrev_b32 {u1}, 13, v0")
        a(f"s_and_b32 {t0}, s2, 15\ns_lshr_b32 {t1}, s2, 6\ns_lshl_b32 {t1}, {t1}, 4\ns_add_u32 {t0}, {t0}, {t1}\ns_and_b32 {t1}, s2, 48\ns_lshl_b32 {t1}, {t1}, 2")
        a(f"s_add_u32 {t0}, {t0}, {t1}\ns_lshl_b32 {t0}, {t0}, 4\ns_add_u32 {t0}, {t0}, {WS_WT}\ns_add_u32 {t1}, {t0}, 4096")
        a(f"buffer_store_dwordx4 {WP.sub(0,4)}, {u1}, {rWS}, {t0} offen sc1\nbuffer_store_dwordx4 {WP.sub(4,4)}, {u1}, {rWS}, {t1} offen sc1", "xs")
        self.staged([self.cmul(RE.sub(2*p,2), IM.sub(2*p,2), T1c.sub(2*(p&1),2), T1s.sub(2*(p&1),2), OR_.sub(2*p,2), OI.sub(2*p,2), True) for p in range(8)])
        for r in range(4):
            for x in range(2):
                a(f"v_cvt_pk_bf16_f32 {WL[4*r+x]}, {OR_[4*r+2*x]}, {OR_[4*r+2*x+1]}\nv_cvt_pk_bf16_f32 {WL[4*r+2+x]}, {OI[4*r+2*x]}, {OI[4*r+2*x+1]}")
        for r in range(4): a(f"v_mfma_f32_16x16x32_bf16 {RE.sub(4*r,4)}, {B1c}, {WL.sub(4*r,4)}, 0")
        a(f"v_lshl_add_u32 {u0}, {vG}, 6, {vKK}\nv_lshlrev_b32 {u0}, 13, {u0}")
        a(f"s_lshr_b32 {t0}, {sT}, 4\ns_lshl_b32 {t0}, {t0}, 8\ns_lshl_b32 {t1}, {sE}, 5\ns_add_u32 {t0}, {t0}, {t1}")
        a(f"s_lshr_b32 {t1}, {sW}, 1\ns_lshl_b32 {t1}, {t1}, 4\ns_add_u32 {t0}, {t0}, {t1}\ns_and_b32 {t1}, {sT}, 15\ns_add_u32 {t0}, {t0}, {t1}")
        a(f"s_lshl_b32 {t0}, {t0}, 4\ns_add_u32 {t0}, {t0}, {WS_X}\ns_add_u32 {t1}, {t0}, {32*8192}")
        for e in range(2):
            for pl in range(2):
                for x in range(2): a(f"v_cvt_pk_bf16_f32 {X8[4*e+2*pl+x]}, {RE[8*x+2*e+pl]}, {RE[8*x+4+2*e+pl]}")
        a(f"buffer_store_dwordx4 {X8.sub(0,4)}, {u0}, {rWS}, {t0} offen sc1\nbuffer_store_dwordx4 {X8.sub(4,4)}, {u0}, {rWS}, {t1} offen sc1", "xs")
        self.stamp("fft1")
        a.put(flat(dma_chunk(2) + dma_chunk(3) + dma_w2(0)))
        A.release(FA); V.release(C1, N1, T1c, T1s, B1c, vKK)
        fU = V.alloc()
        a(f"s_lshl_b32 {t0}, {sW}, 4\nv_cvt_f32_u32 {u0}, {t0}\nv_add_f32 {fU}, {u0}, {fM}")
        K64 = V.alloc(24)
        a(f"v_mul_f32 {u0}, {fl(1/64)}, {fU}\nv_mul_f32 {u1}, {u0}, {fG4}")
        for tp in range(2):
            table(u0, [32*tp + 16*x + r for x in range(2) for r in range(4)], u1)
            for x in range(2):
                k = K64.sub(6 * (2*tp + x), 6)
                for y in range(2):
                    a(f"v_cvt_pk_bf16_f32 {k[y]}, -{ts[4*x+2*y]}, -{ts[4*x+2*y+1]}\nv_cvt_pk_bf16_f32 {k[2+y]}, {tc[4*x+2*y]}, {tc[4*x+2*y+1]}")
                    a(f"v_cvt_pk_bf16_f32 {k[4+y]}, {ts[4*x+2*y]}, {ts[4*x+2*y+1]}")
        V.release(WL, WP, X8)
        TAc, TAs, TBc, TBs = [V.alloc(8) for _ in range(4)]
        a(f"v_mul_f32 {u0}, {fl(1/2048)}, {fU}\nv_mul_f32 {u1}, {u0}, {fG4}")
        for j, ix in enumerate([0, 1, 2, 3, 16, 17, 18, 19]): a(f"v_fmamk_f32 {TAs[j]}, {u0}, {fl(ix)}, {u1}")
        for j in range(8): self.sincos(TAs[j], TAc[j], TAs[j])
        a(f"v_cvt_f32_u32 {vT}, {t0}\nv_add_f32 {vT}, {vT}, {fG4}")
        for T in range(2):
            a(f"v_add_f32 {u0}, {fl(16*T)}, {fM}\nv_mul_f32 {u0}, {fl(1/2048)}, {u0}\nv_mul_f32 {u1}, {u0}, {vT}")
            for r in range(4): a(f"v_fmamk_f32 {TBs[4*T+r]}, {u0}, {fl(r)}, {u1}")
        for j in range(8): self.sincos(TBs[j], TBc[j], TBs[j])
        a(f"s_mov_b32 {t1}, {fl(2.0/(2048*512))}\ns_cmp_eq_u32 s2, 255\ns_cselect_b32 {t0}, {fl(1.0/(2048*512))}, {t1}")
        for j in range(8): a(f"v_mul_f32 {TBc[j]}, {t0}, {TBc[j]}\nv_mul_f32 {TBs[j]}, {t0}, {TBs[j]}")
        V.release(fU)
        vXR = V.alloc(4, 1); vWR = V.alloc(4, 1); vCR = V.alloc()
        a(f"v_bfe_u32 {u0}, {vN}, 1, 3\nv_xor_b32 {u0}, {u0}, {vH}\nv_lshlrev_b32 {u0}, 4, {u0}\nv_lshl_add_u32 {u0}, {vN}, 7, {u0}\nv_add_u32 {vXR[0]}, {sM0}, {u0}")
        for k in range(1, 4): a(f"v_xor_b32 {vXR[k]}, {32*k}, {vXR[0]}")
        a(f"v_bfe_u32 {u0}, {vL}, 2, 2\nv_mul_u32_u24 {u0}, 320, {u0}\nv_lshl_add_u32 {u0}, {vH}, 11, {u0}")
        a(f"v_and_b32 {u1}, 16, {vL}\nv_lshl_add_u32 {u0}, {u1}, 1, {u0}\nv_and_b32 {u1}, 1, {vL}\nv_lshl_add_u32 {u0}, {u1}, 4, {u0}")
        a(f"v_and_b32 {u1}, 2, {vL}\nv_lshl_add_u32 {vWR[0]}, {u1}, 2, {u0}")
        for k in range(1, 4): a(f"v_xor_b32 {vWR[k]}, {64*k}, {vWR[0]}")
        a(f"s_lshl_b32 {t0}, {sW}, 6\nv_xor_b32 {vCR}, {t0}, {vWR[0]}")
        SEL = V.alloc(4); CS = V.alloc(4)
        a(f"v_lshrrev_b32 {u0}, 2, {vL}\nv_xor_b32 {u0}, {u0}, {vG}\nv_and_b32 {u0}, 1, {u0}\nv_subrev_u32 {u0}, 1, {u0}")
        for j in range(4): a(f"v_and_b32 {SEL[j]}, 0x3f803f80, {u0}")
        vB1 = V.alloc()
        a(f"v_and_b32 {u0}, 19, {vN}\nv_and_b32 {u1}, 4, {vN}\nv_lshl_add_u32 {u0}, {u1}, 1, {u0}\nv_and_b32 {u1}, 8, {vN}\nv_lshrrev_b32 {u1}, 1, {u1}\nv_add_lshl_u32 {u0}, {u0}, {u1}, 1")
        a(f"s_mul_i32 {t0}, {sQ}, 896\ns_lshl_b32 {t1}, {sC}, 8\ns_add_u32 {t0}, {t0}, {t1}\ns_lshl_b32 {t1}, {sW}, 6\ns_add_u32 {t0}, {t0}, {t1}\nv_add_u32 {u0}, {t0}, {u0}")
        a(f"buffer_load_ushort {vB1}, {u0}, {rB1}, 0 offen", "b1")
        self.stamp("consts")
        WF = [A.alloc(16), A.alloc(16)]; XF = [A.alloc(4), A.alloc(4)]; CF = [A.alloc(4), A.alloc(4)]
        def g1_reads(n, k, buf):
            base = (n & 1) * 32768; g = Asm(); tg = f"r{n}_{k}"
            g(f"ds_read_b128 {XF[buf]}, {vXR[k]} offset:{base}", tg)
            for t in range(4):
                for x in range(2): g(f"ds_read_b64_tr_b16 {WF[buf].sub(4*t+2*x,2)}, {vWR[t]} offset:{base+16384+4096*k+1024*x}", tg)
            for x in range(2): g(f"ds_read_b64_tr_b16 {CF[buf].sub(2*x,2)}, {vCR} offset:{base+16384+4096*k+1024*x}", tg)
            return g.take()
        for n in range(8):
            a.wait_vm(f"c{n}"); a("s_barrier")
            if n == 2:
                L = a.newlabel("NOF"); a(f"s_cmp_lg_u32 {sW}, 0\ns_cbranch_scc1 {L}\ns_lshl_b32 {t0}, s2, 2\ns_add_u32 {t0}, {t0}, {WS_FX}")
                a.cond = True; self.flag(t0); a.cond = False; a.label(L)
            if n and n % 2 == 0:
                for r in (vXR, vWR):
                    for k in range(4): a(f"v_xor_b32 {r[k]}, 0x10000, {r[k]}")
                a(f"v_xor_b32 {vCR}, 0x10000, {vCR}")
            fill = dma_chunk(n + 3) if 1 <= n <= 4 else (dma_w2(2*n - 9) + dma_w2(2*n - 8) if n >= 5 else [])
            body = Asm()
            body.put(g1_reads(n, 0, 0))
            for k in range(4):
                buf = k & 1
                nxt = g1_reads(n, k + 1, buf ^ 1) if k < 3 else []
                body.wait_lg(f"r{n}_{k}")
                first = (n == 0 and k == 0)
                for t in range(4):
                    body(f"v_mfma_f32_32x32x16_bf16 {ACC.sub(16*t,16)}, {WF[buf].sub(4*t,4)}, {XF[buf]}, {'0' if first else ACC.sub(16*t,16)}")
                    body.put(nxt[3*t:3*t+3])
                body(f"v_mfma_f32_16x16x32_bf16 {CS}, {SEL}, {CF[buf]}, {'0' if first else CS}")
            a.put(interleave(body.take(), fill, every=2))
        self.stamp("gemm1")
        A.release(*XF, *CF); V.release(vXR, vCR, vX, vW1, vW2)
        a(f"s_mov_b32 {t0}, {WS_FX}")
        self.poll(vL16, t0, 4)
        ST = V.alloc(2)
        a(f"v_and_b32 {u0}, 3, {vN}\nv_and_b32 {u1}, 4, {vN}\nv_lshl_add_u32 {u0}, {u1}, 3, {u0}\nv_lshrrev_b32 {u1}, 3, {vN}\nv_lshl_add_u32 {u0}, {u1}, 2, {u0}\nv_lshlrev_b32 {u0}, 3, {u0}")
        a(f"s_lshl_b32 {t0}, {sRow0}, 3\ns_add_u32 {t0}, {t0}, {WS_STATS}")
        a(f"buffer_load_dwordx2 {ST}, {u0}, {rWS}, {t0} offen sc1", "st")
        XA = A.alloc(32); WT = V.alloc(8)
        a(f"s_lshl_b32 {t0}, s2, 13\ns_add_u32 {t1}, {t0}, {WS_X}\ns_add_u32 {t2}, {t1}, 4096")
        for j in range(8): a(f"buffer_load_dwordx4 {XA.sub(4*j,4)}, {vL16}, {rWS}, {t1 if j < 4 else t2} offen offset:{1024*(j&3)} sc1", "xa")
        a(f"s_lshl_b32 {t1}, {sW}, 10\ns_add_u32 {t0}, {t0}, {t1}\ns_add_u32 {t0}, {t0}, {WS_WT}\ns_add_u32 {t1}, {t0}, 4096")
        a(f"buffer_load_dwordx4 {WT.sub(0,4)}, {vL16}, {rWS}, {t0} offen sc1\nbuffer_load_dwordx4 {WT.sub(4,4)}, {vL16}, {rWS}, {t1} offen sc1", "xa")
        L = a.newlabel("NON"); a(f"s_or_b32 {t0}, s2, {sW}\ns_cmp_lg_u32 {t0}, 0\ns_cbranch_scc1 {L}\ns_mov_b32 {t0}, {WS_NONCE}")
        a.cond = True; self.flag(t0); a.cond = False; a.label(L)
        a(f"v_and_b32 {u0}, 0xffff0000, {CS[0]}\nv_sub_f32 {u1}, {CS[0]}, {u0}\nv_cvt_pk_bf16_f32 {SEL[0]}, {u0}, {u1}")
        a(f"v_mov_b32 {SEL[1]}, {SEL[0]}\nv_lshl_or_b32 {SEL[2]}, {vB1}, 16, {vB1}\nv_mov_b32 {SEL[3]}, 0")
        a(f"s_lshl_b32 {t0}, {sW}, 9\nv_lshlrev_b32 {u0}, 4, {vN}\nv_add_u32 {u0}, {L_CS}, {u0}\nv_add_u32 {u1}, {t0}, {u0}")
        a(f"ds_write_b128 {u1}, {SEL}", "csw"); a.wait_lg("csw"); a("s_barrier")
        for t in range(4): a(f"ds_read_b128 {WF[0].sub(4*t,4)}, {u0} offset:{512*t}", "csr")
        a.wait_vm("st")
        KC, KI = V.alloc(2), V.alloc(2)
        a(f"v_and_b32 {u0}, 0xffff0000, {ST[0]}\nv_sub_f32 {u1}, {ST[0]}, {u0}\nv_cvt_pk_bf16_f32 {CS[0]}, -{u0}, -{u0}\nv_cvt_pk_bf16_f32 {CS[1]}, -{u1}, -{u1}")
        a(f"v_and_b32 {u0}, 0xffff0000, {ST[1]}\nv_sub_f32 {u1}, {ST[1]}, {u0}\nv_cvt_pk_bf16_f32 {CS[2]}, {u0}, {u1}\nv_mov_b32 {CS[3]}, 0")
        a(f"v_subrev_u32 {u0}, 1, {vH}")
        for j in range(3): a(f"v_and_b32 {CS[j]}, {CS[j]}, {u0}")
        a.wait_lg("csr")
        for t in range(4): a(f"v_mfma_f32_32x32x16_bf16 {ACC.sub(16*t,16)}, {WF[0].sub(4*t,4)}, {CS}, {ACC.sub(16*t,16)}")
        c1 = 2 * math.sqrt(2 / math.pi) * math.log2(math.e); c2 = c1 * 0.044715
        a(f"v_rcp_f32 {u0}, {ST[1]}\nv_mov_b32 {KI[0]}, {ST[1]}\nv_mul_f32 {KC[1]}, {fl(-c1)}, {u0}\nv_mul_f32 {u1}, {u0}, {u0}\nv_mul_f32 {u1}, {u1}, {u0}\nv_mul_f32 {KC[0]}, {fl(-c2)}, {u1}")
        V.release(SEL, CS, vB1, ST)
        HO = V.alloc(32); sHb = S.alloc()
        a(f"s_lshl_b32 {t0}, {sI}, 2\ns_add_u32 {t0}, {t0}, {sQ}\ns_lshl_b32 {t0}, {t0}, 2\ns_add_u32 {t0}, {t0}, {sW}\ns_mul_i32 {t0}, {t0}, {28*1024}\ns_add_u32 {sHb}, {t0}, {WS_H}")
        a(f"s_lshl_b32 {t0}, {sC}, 13\ns_add_u32 {t0}, {t0}, {sHb}\ns_add_u32 {t1}, {t0}, 4096")
        LSK = a.newlabel("LIGHT")
        for p in range(8):
            if p == 4: a(f"s_cmp_eq_u32 {sC}, 3\ns_cbranch_scc1 {LSK}"); a.cond = True
            ls = []
            for j in range(4):
                x = ACC.sub(8*p + 2*j, 2); z = tc.sub(2*j, 2)
                ls.append([f"v_pk_mul_f32 {z}, {x}, {x}", f"v_pk_fma_f32 {z}, {z}, {KC}, {KC} op_sel:[0,0,1] op_sel_hi:[1,0,1]",
                           f"v_pk_mul_f32 {z}, {z}, {x}", f"v_exp_f32 {z[0]}, {z[0]}\nv_exp_f32 {z[1]}, {z[1]}",
                           f"v_pk_fma_f32 {z}, {z}, {KI}, {KI} op_sel_hi:[1,0,0]", f"v_rcp_f32 {z[0]}, {z[0]}\nv_rcp_f32 {z[1]}, {z[1]}",
                           f"v_pk_mul_f32 {z}, {z}, {x}", f"v_cvt_pk_bf16_f32 {HO[4*p+j]}, {z[0]}, {z[1]}"])
            self.staged(ls)
            a(f"buffer_store_dwordx4 {HO.sub(4*p,4)}, {vL16}, {rWS}, {t0 if p < 4 else t1} offen offset:{1024*(p&3)} sc1", "hs")
        a.cond = False; a.label(LSK)
        V.release(KC, KI)
        self.stamp("gelu")
        sFH = S.alloc()
        a(f"s_lshl_b32 {t0}, {sI}, 2\ns_add_u32 {t0}, {t0}, {sQ}\ns_lshl_b32 {t0}, {t0}, 7\ns_lshl_b32 {t1}, {sW}, 4\ns_add_u32 {t0}, {t0}, {t1}\ns_add_u32 {sFH}, {t0}, {WS_FH}")
        WW = [tc, ts]
        for T in range(2):
            for pl in range(2):
                for x in range(2):
                    s = WT[4*T + 2*pl + x]
                    if T == 0 and pl == 0 and x == 0: a.wait_vm("xa")
                    a(f"v_lshlrev_b32 {WW[pl][4*T+2*x]}, 16, {s}\nv_and_b32 {WW[pl][4*T+2*x+1]}, 0xffff0000, {s}")
        RE, IM, OR_, OI, PK = ACC.sub(0, 8), ACC.sub(8, 8), ACC.sub(16, 8), ACC.sub(24, 8), ACC.sub(32, 8)
        def dft64(src):
            for tau in range(4):
                for T in range(2):
                    d = src(T, tau)
                    a(f"v_mfma_f32_16x16x32_bf16 {RE.sub(4*T,4)}, {d}, {K64.sub(6*tau+2,4)}, {RE.sub(4*T,4) if tau else 0}")
                    a(f"v_mfma_f32_16x16x32_bf16 {IM.sub(4*T,4)}, {d}, {K64.sub(6*tau,4)}, {IM.sub(4*T,4) if tau else 0}")
        def tw(c, s, conj):
            self.staged([self.cmul(RE.sub(2*p,2), IM.sub(2*p,2), c.sub(2*p,2), s.sub(2*p,2), OR_.sub(2*p,2), OI.sub(2*p,2), conj) for p in range(4)])
        def pack_planes():
            for j in range(4): a(f"v_cvt_pk_bf16_f32 {PK[j]}, {OR_[2*j]}, {OR_[2*j+1]}\nv_cvt_pk_bf16_f32 {PK[4+j]}, {OI[2*j]}, {OI[2*j+1]}")
        dft64(lambda T, tau: XA.sub(16*T + 4*tau, 4))
        a("s_waitcnt vmcnt(0)")
        a(f"s_lshl_b32 {t0}, {sC}, 2\ns_add_u32 {t0}, {t0}, {sFH}"); self.flag(t0)
        tw(TAc, TAs, True); pack_planes()
        pr, pi = PK.sub(0, 4), PK.sub(4, 4)
        for T in range(2):
            a(f"v_mfma_f32_16x16x32_bf16 {RE.sub(4*T,4)}, {C32[T]}, {pr}, 0\nv_mfma_f32_16x16x32_bf16 {IM.sub(4*T,4)}, {C32[T]}, {pi}, 0")
        for T in range(2):
            a(f"v_mfma_f32_16x16x32_bf16 {RE.sub(4*T,4)}, {S32[T]}, {pi}, {RE.sub(4*T,4)}\nv_mfma_f32_16x16x32_bf16 {IM.sub(4*T,4)}, {N32[T]}, {pr}, {IM.sub(4*T,4)}")
        tw(WW[0], WW[1], False); pack_planes()
        for T in range(2):
            a(f"v_mfma_f32_16x16x32_bf16 {RE.sub(4*T,4)}, {pr}, {C32[T]}, 0\nv_mfma_f32_16x16x32_bf16 {IM.sub(4*T,4)}, {pi}, {C32[T]}, 0")
        for T in range(2):
            a(f"v_mfma_f32_16x16x32_bf16 {RE.sub(4*T,4)}, {pi}, {N32[T]}, {RE.sub(4*T,4)}\nv_mfma_f32_16x16x32_bf16 {IM.sub(4*T,4)}, {pr}, {S32[T]}, {IM.sub(4*T,4)}")
        tw(TBc, TBs, False)
        for T in range(2):
            for x in range(2): a(f"v_cvt_pk_bf16_f32 {PK[4*T+x]}, {OI[4*T+2*x]}, {OI[4*T+2*x+1]}\nv_cvt_pk_bf16_f32 {PK[4*T+2+x]}, {OR_[4*T+2*x]}, {OR_[4*T+2*x+1]}")
        a(f"s_lshl_b32 {t0}, {sW}, 10\nv_add_u32 {u0}, {L_EX}, {vL16}\nv_add_u32 {u1}, {t0}, {u0}")
        a(f"ds_write_b128 {u1}, {PK.sub(0,4)}\nds_write_b128 {u1}, {PK.sub(4,4)} offset:4096", "exw")
        a.wait_lg("exw"); a("s_barrier")
        for j in range(8): a(f"ds_read_b128 {XA.sub(4*j,4)}, {u0} offset:{1024*j}", "exr")
        a.wait_lg("exr")
        dft64(lambda T, tau: XA.sub(16*T + 4*tau, 4))
        a(f"v_lshrrev_b32 {u0}, 1, {vM}\nv_lshl_add_u32 {u0}, {u0}, 3, {vG}\nv_lshlrev_b32 {u0}, 13, {u0}\nv_and_b32 {u1}, 1, {vM}\nv_lshl_add_u32 {u0}, {u1}, 4, {u0}")
        a(f"s_and_b32 {t0}, s2, 0xe3\ns_and_b32 {t1}, s2, 12\ns_lshl_b32 {t1}, {t1}, 1\ns_add_u32 {t0}, {t0}, {t1}\ns_and_b32 {t1}, s2, 16\ns_lshr_b32 {t1}, {t1}, 2\ns_add_u32 {t0}, {t0}, {t1}")
        a(f"s_lshl_b32 {t0}, {t0}, 5\ns_lshl_b32 {t1}, {sW}, 19\ns_add_u32 {t0}, {t0}, {t1}\ns_add_u32 {t0}, {t0}, {WS_Y}\ns_add_u32 {t1}, {t0}, 32768")
        for T in range(2):
            for x in range(2): a(f"v_cvt_pk_bf16_f32 {PK[4*T+x]}, {IM[4*T+2*x]}, {IM[4*T+2*x+1]}\nv_cvt_pk_bf16_f32 {PK[4*T+2+x]}, {RE[4*T+2*x]}, {RE[4*T+2*x+1]}")
        a(f"buffer_store_dwordx4 {PK.sub(0,4)}, {u0}, {rWS}, {t0} offen sc1\nbuffer_store_dwordx4 {PK.sub(4,4)}, {u0}, {rWS}, {t1} offen sc1", "ys")
        A.release(XA); V.release(K64, TAc, TAs, TBc, TBs, WT)
        self.stamp("sfft")
        vZ = V.alloc(); a(f"v_mov_b32 {vZ}, 0")
        self.poll(vZ, sFH, 4)
        HA = A.alloc(80)
        def hoff(u): a(f"s_lshl_b32 {t2}, {sC}, 3\ns_add_u32 {t2}, {t2}, {4*u}\ns_sub_u32 {t3}, {t2}, 28\ns_cmp_ge_u32 {t2}, 28\ns_cselect_b32 {t2}, {t3}, {t2}\ns_lshl_b32 {t2}, {t2}, 10\ns_add_u32 {t2}, {t2}, {sHb}")
        L = a.newlabel("HEAVY"); a(f"s_cmp_lg_u32 {sC}, 3\ns_cbranch_scc1 {L}"); a.cond = True
        for k in range(4): a(f"buffer_load_dwordx4 {HO.sub(16+4*k,4)}, {vL16}, {rWS}, {sHb} offen offset:{1024*k} sc1", f"h{4+k}")
        a.cond = False; a.label(L)
        for u in range(2, 7):
            hoff(u)
            for k in range(4): a(f"buffer_load_dwordx4 {HA.sub(16*(u-2)+4*k,4)}, {vL16}, {rWS}, {t2} offen offset:{1024*k} sc1", f"h{4*u+k}")
        a("s_barrier")
        L = a.newlabel("NOF"); a(f"s_cmp_lg_u32 {sW}, 0\ns_cbranch_scc1 {L}\ns_lshl_b32 {t0}, s2, 2\ns_add_u32 {t0}, {t0}, {WS_FY}")
        a.cond = True; self.flag(t0); a.cond = False; a.label(L)
        self.stamp("hpoll")
        for k in range(4): a(f"v_xor_b32 {vWR[k]}, 0x30000, {vWR[k]}")
        def g2_reads(p, buf):
            g = Asm()
            if p == 4:
                for k in range(4): g(f"v_xor_b32 {vWR[k]}, 0x20000, {vWR[k]}")
            if p == 20:
                for k in range(4): g(f"v_xor_b32 {vWR[k]}, 0x10000, {vWR[k]}")
            pre = g.take()
            base = (L_W2A - 0x20000 + 4096 * p) if p < 4 else (4096 * (p - 4)) & 0xffff
            for t in range(4):
                for x in range(2): g(f"ds_read_b64_tr_b16 {WF[buf].sub(4*t+2*x,2)}, {vWR[t]} offset:{base+1024*x}", f"q{p}")
            return pre, g.take()
        pre, rd = g2_reads(0, 0); a.put(pre + rd)
        for p in range(28):
            buf = p & 1
            pre, nxt = g2_reads(p + 1, buf ^ 1) if p < 27 else ([], [])
            if p >= 4: a.wait_vm(f"h{p}")
            a.wait_lg(f"q{p}"); a.put(pre)
            hf = HO.sub(4*p, 4) if p < 8 else HA.sub(4*(p-8), 4)
            for t in range(4):
                a(f"v_mfma_f32_32x32x16_bf16 {ACC.sub(16*t,16)}, {WF[buf].sub(4*t,4)}, {hf}, {ACC.sub(16*t,16) if p else 0}")
                a.put(nxt[2*t:2*t+2])
        self.stamp("gemm2")
        a(f"v_lshrrev_b32 {u0}, 3, {vN}\nv_lshlrev_b32 {u0}, 8, {u0}\nv_lshl_add_u32 {u0}, {vH}, 7, {u0}\nv_and_b32 {u1}, 7, {vN}\nv_lshl_add_u32 {u0}, {u1}, 4, {u0}")
        a(f"s_lshl_b32 {t0}, {sI}, 4\ns_add_u32 {t0}, {t0}, {sJJ}\ns_lshl_b32 {t0}, {t0}, 2\ns_add_u32 {t0}, {t0}, {sW}\ns_lshl_b32 {t0}, {t0}, 13\ns_add_u32 {t0}, {t0}, {WS_P}\ns_add_u32 {t1}, {t0}, 4096")
        for blk in range(8):
            for j in range(4): a(f"v_cvt_pk_bf16_f32 {HO[4*blk+j]}, {ACC[8*blk+2*j]}, {ACC[8*blk+2*j+1]}")
            a(f"buffer_store_dwordx4 {HO.sub(4*blk,4)}, {u0}, {rWS}, {t0 if blk < 4 else t1} offen offset:{1024*(blk&3)} sc1", "ps")
        A.release(HA, *WF); V.release(vWR)
        K3 = V.alloc(6); T3c, T3s, B3 = V.alloc(4), V.alloc(4), V.alloc(4)
        for y in range(2): a(f"v_xor_b32 {K3[y]}, {sOdd}, {S32[0][y]}\nv_xor_b32 {K3[2+y]}, {sOdd}, {C32[0][y]}\nv_xor_b32 {K3[4+y]}, {sOdd}, {N32[0][y]}")
        a(f"v_add_u32 {vT}, 1, {vG}\nv_cvt_f32_u32 {vT}, {vT}")
        a(f"s_and_b32 {t0}, {sW}, 1\ns_lshl_b32 {t0}, {t0}, 4\nv_cvt_f32_u32 {u0}, {t0}\nv_add_f32 {u0}, {u0}, {fM}\nv_mul_f32 {u0}, {fl(1/512)}, {u0}\nv_mul_f32 {u1}, {u0}, {vT}")
        for t in range(4): a(f"v_fmamk_f32 {T3s[t]}, {u0}, {fl(4*t)}, {u1}")
        for t in range(4): self.sincos(T3s[t], T3c[t], T3s[t])
        a(f"v_mul_f32 {u0}, {fl(1/16)}, {fM}\nv_mul_f32 {u1}, {u0}, {vT}")
        table(u0, [0, 4, 8, 12], u1)
        a(f"v_cvt_pk_bf16_f32 {B3[0]}, {tc[0]}, {tc[1]}\nv_cvt_pk_bf16_f32 {B3[1]}, {tc[2]}, {tc[3]}\nv_cvt_pk_bf16_f32 {B3[2]}, -{ts[0]}, -{ts[1]}\nv_cvt_pk_bf16_f32 {B3[3]}, -{ts[2]}, -{ts[3]}")
        a("s_waitcnt vmcnt(0)")
        a(f"s_lshl_b32 {t0}, {sI}, 2\ns_add_u32 {t0}, {t0}, {sC}\ns_lshl_b32 {t0}, {t0}, 7\ns_lshl_b32 {t1}, {sW}, 4\ns_add_u32 {t0}, {t0}, {t1}\ns_lshl_b32 {t1}, {sQ}, 2\ns_add_u32 {t0}, {t0}, {t1}\ns_add_u32 {t0}, {t0}, {WS_FP}")
        self.flag(t0)
        self.stamp("pflag")
        a(f"s_mov_b32 {t0}, {WS_FY}")
        self.poll(vL16, t0, 4)
        YL = HO.sub(0, 8); XO = HO.sub(8, 8); B2 = HO.sub(16, 8)
        a(f"s_lshl_b32 {t0}, {sI}, 4\ns_add_u32 {t0}, {t0}, {sJJ}\ns_lshl_b32 {t0}, {t0}, 13\ns_lshl_b32 {t1}, {sW}, 11\ns_add_u32 {t0}, {t0}, {t1}\ns_add_u32 {t0}, {t0}, {WS_Y}")
        a(f"buffer_load_dwordx4 {YL.sub(0,4)}, {vL16}, {rWS}, {t0} offen sc1\nbuffer_load_dwordx4 {YL.sub(4,4)}, {vL16}, {rWS}, {t0} offen offset:1024 sc1", "yl")
        vO = V.alloc(); sO = S.alloc()
        a(f"v_bfe_u32 {u0}, {vL}, 3, 2\nv_lshl_add_u32 {u0}, {vH}, 5, {u0}\nv_lshlrev_b32 {u0}, 10, {u0}\nv_and_b32 {u1}, 7, {vL}\nv_lshl_add_u32 {vO}, {u1}, 4, {u0}")
        a(f"s_lshr_b32 {t0}, {sJJ}, 3\ns_lshl_b32 {t0}, {t0}, 6\ns_and_b32 {t2}, {sJJ}, 7\ns_lshl_b32 {t2}, {t2}, 2\ns_add_u32 {t0}, {t0}, {t2}\ns_lshl_b32 {t2}, {sI}, 7\ns_add_u32 {t0}, {t0}, {t2}")
        a(f"s_lshl_b32 {t0}, {t0}, 10\ns_lshl_b32 {t2}, {sW}, 8\ns_add_u32 {sO}, {t0}, {t2}")
        a(f"buffer_load_dwordx4 {XO.sub(0,4)}, {vO}, {rX}, {sO} offen\nbuffer_load_dwordx4 {XO.sub(4,4)}, {vO}, {rX}, {sO} offen offset:128", "xo")
        vD = V.alloc(); a(f"v_lshrrev_b32 {vD}, 3, {vL}\nv_lshlrev_b32 {vD}, 4, {vD}")
        a(f"buffer_load_dwordx4 {B2.sub(0,4)}, {vD}, {rB2}, {t2} offen\nbuffer_load_dwordx4 {B2.sub(4,4)}, {vD}, {rB2}, {t2} offen offset:128", "b2")
        a(f"s_add_u32 {t1}, {t1}, {L_YB}\nv_add_u32 {u0}, {t1}, {vL16}")
        a.wait_vm("yl")
        a(f"ds_write_b128 {u0}, {YL.sub(0,4)}\nds_write_b128 {u0}, {YL.sub(4,4)} offset:1024", "yw")
        a(f"v_and_b32 {u0}, 7, {vL}\nv_lshrrev_b32 {u1}, 3, {vL}\nv_lshl_add_u32 {u0}, {u1}, 5, {u0}\nv_lshlrev_b32 {u0}, 5, {u0}")
        a(f"s_lshr_b32 {t0}, {sW}, 1\ns_lshl_b32 {t1}, {t0}, 4\ns_add_u32 {t1}, {t1}, {L_YB}\nv_add_u32 {u0}, {t1}, {u0}")
        a.wait_lg("yw"); a("s_barrier")
        FA = A.alloc(16)
        for t in range(4):
            for x in range(2): a(f"ds_read_b64_tr_b16 {FA.sub(4*t+2*x,2)}, {u0} offset:{256*t+8*x}", f"yr{t}")
        RE, IM, OR_, OI = ACC.sub(0, 16), ACC.sub(16, 16), ACC.sub(32, 16), ACC.sub(48, 16)
        for t in range(4):
            a.wait_lg(f"yr{t}")
            a(f"v_mfma_f32_16x16x32_bf16 {RE.sub(4*t,4)}, {FA.sub(4*t,4)}, {K3.sub(2,4)}, 0\nv_mfma_f32_16x16x32_bf16 {IM.sub(4*t,4)}, {FA.sub(4*t,4)}, {K3.sub(0,4)}, 0")
        self.staged([self.cmul(RE.sub(2*p,2), IM.sub(2*p,2), T3c.sub((p>>2)*2,2), T3s.sub((p>>2)*2,2), OR_.sub(2*p,2), OI.sub(2*p,2), False, bc=(p>>1)&1) for p in range(8)])
        for r in range(4):
            for x in range(2): a(f"v_cvt_pk_bf16_f32 {IM[4*r+x]}, {OR_[8*x+r]}, {OR_[8*x+4+r]}\nv_cvt_pk_bf16_f32 {IM[4*r+2+x]}, {OI[8*x+r]}, {OI[8*x+4+r]}")
        for r in range(4): a(f"v_mfma_f32_16x16x32_bf16 {RE.sub(4*r,4)}, {IM.sub(4*r,4)}, {B3}, 0")
        a(f"s_mul_i32 {t0}, {t0}, {4*1056}\ns_and_b32 {t1}, {sW}, 1\ns_lshl_b32 {t1}, {t1}, 5\ns_add_u32 {t0}, {t0}, {t1}\ns_add_u32 {t0}, {t0}, {L_SB}")
        a(f"v_lshlrev_b32 {u0}, 6, {vM}\nv_lshl_add_u32 {u0}, {vG}, 3, {u0}\nv_add_u32 {u0}, {t0}, {u0}")
        for r in range(4):
            a(f"v_cvt_pk_bf16_f32 {YL[2*r]}, {RE[4*r]}, {RE[4*r+1]}\nv_cvt_pk_bf16_f32 {YL[2*r+1]}, {RE[4*r+2]}, {RE[4*r+3]}")
            a(f"ds_write_b64 {u0}, {YL.sub(2*r,2)} offset:{1056*r}", "sw")
        a(f"v_and_b32 {u1}, 7, {vL}\nv_mul_u32_u24 {u0}, 1056, {u1}\nv_add_u32 {u0}, {u0}, {vD}\ns_add_u32 {t0}, {t2}, {L_SB}\nv_add_u32 {u0}, {t0}, {u0}")
        a.wait_lg("sw"); a("s_barrier")
        a(f"ds_read_b128 {YL.sub(0,4)}, {u0}\nds_read_b128 {YL.sub(4,4)}, {u0} offset:128", "sr")
        G = ACC.sub(0, 16); SF = ACC.sub(16, 16); PL = ACC.sub(32, 32)
        a.wait_vm("b2")
        for j in range(8): a(f"v_lshlrev_b32 {G[2*j]}, 16, {B2[j]}\nv_and_b32 {G[2*j+1]}, 0xffff0000, {B2[j]}")
        a.wait_lg("sr")
        for j in range(8): a(f"v_lshlrev_b32 {SF[2*j]}, 16, {YL[j]}\nv_and_b32 {SF[2*j+1]}, 0xffff0000, {YL[j]}")
        vBW, vBR, vP = V.alloc(), V.alloc(), V.alloc()
        a(f"s_mul_i32 {t0}, {sW}, 2304\ns_add_u32 {t0}, {t0}, {L_BN}\nv_mul_u32_u24 {vBW}, 144, {u1}\nv_add3_u32 {vBW}, {vBW}, {vD}, {t0}")
        a(f"v_mul_u32_u24 {vBR}, 9, {vD}\nv_lshlrev_b32 {u1}, 4, {u1}\nv_add3_u32 {vBR}, {vBR}, {u1}, {t0}")
        a(f"v_lshlrev_b32 {vP}, 10, {vG}\nv_lshl_add_u32 {vP}, {vM}, 4, {vP}")
        self.stamp("fft3")
        a(f"s_lshl_b32 {t0}, {sI}, 2\ns_add_u32 {t0}, {t0}, {sW}\ns_lshl_b32 {t0}, {t0}, 7\ns_lshl_b32 {t1}, {sQ}, 4\ns_add_u32 {t0}, {t0}, {t1}\ns_add_u32 {t0}, {t0}, {WS_FP}")
        self.poll(vZ, t0, 4)
        self.stamp("ppoll")
        a(f"s_lshl_b32 {t0}, {sI}, 6\ns_lshl_b32 {t1}, {sW}, 2\ns_add_u32 {t0}, {t0}, {t1}\ns_add_u32 {t0}, {t0}, {sQ}\ns_lshl_b32 {t0}, {t0}, 13\ns_lshl_b32 {t1}, {sC}, 8\ns_add_u32 {t0}, {t0}, {t1}\ns_add_u32 {t0}, {t0}, {WS_P}")
        for gm in range(2):
            for qq in range(4):
                a(f"s_add_u32 {t1}, {t0}, {qq*16*8192 + 4096*gm}\nbuffer_load_dwordx4 {PL.sub(16*gm+4*qq,4)}, {vP}, {rWS}, {t1} offen sc1", f"p{gm}{qq}")
        a(f"s_mov_b32 {t2}, 0x00003f80\ns_mov_b32 {t3}, 0x3f800000")
        nl2e = V.alloc(2); a(f"v_mov_b32 {nl2e[0]}, {fl(-math.log2(math.e))}")
        for gm in range(2):
            for qq in range(4):
                a.wait_vm(f"p{gm}{qq}")
                for j in range(4):
                    s = PL[16*gm + 4*qq + j]
                    a(f"v_dot2c_f32_bf16 {G[8*gm+2*j]}, {t2}, {s}\nv_dot2c_f32_bf16 {G[8*gm+2*j+1]}, {t3}, {s}")
            ls = []
            for j in range(4):
                x = G.sub(8*gm + 2*j, 2); z = tc.sub(2*j, 2)
                ls.append([f"v_pk_mul_f32 {z}, {x}, {nl2e} op_sel_hi:[1,0]", f"v_exp_f32 {z[0]}, {z[0]}\nv_exp_f32 {z[1]}, {z[1]}",
                           f"v_pk_mul_f32 {x}, {x}, {SF.sub(8*gm+2*j,2)}",
                           f"v_pk_add_f32 {z}, {z}, 1.0 op_sel_hi:[1,0]", f"v_rcp_f32 {z[0]}, {z[0]}\nv_rcp_f32 {z[1]}, {z[1]}",
                           f"v_pk_mul_f32 {z}, {z}, {x}", f"v_cvt_pk_bf16_f32 {YL[4*gm+j]}, {z[0]}, {z[1]}"])
            self.staged(ls)
            a(f"ds_write_b128 {vBW}, {YL.sub(4*gm,4)} offset:{1152*gm}", "bw")
            a(f"ds_read_b128 {B2.sub(4*gm,4)}, {vBR} offset:{1152*gm}", f"br{gm}")
        for j in range(8): a(f"v_lshlrev_b32 {SF[2*j]}, 16, {XO[j]}\nv_and_b32 {SF[2*j+1]}, 0xffff0000, {XO[j]}")
        for gm in range(2):
            a.wait_lg(f"br{gm}")
            for j in range(4):
                a(f"v_dot2c_f32_bf16 {SF[8*gm+2*j]}, {t2}, {B2[4*gm+j]}\nv_dot2c_f32_bf16 {SF[8*gm+2*j+1]}, {t3}, {B2[4*gm+j]}")
            for j in range(4): a(f"v_cvt_pk_bf16_f32 {XO[4*gm+j]}, {SF[8*gm+2*j]}, {SF[8*gm+2*j+1]}")
            a(f"buffer_store_dwordx4 {XO.sub(4*gm,4)}, {vO}, {rOUT}, {sO} offen offset:{128*gm}")
        self.stamp("end")
        if self.stamps:
            a(f"s_lshl_b32 {t0}, s2, 2\ns_add_u32 {t0}, {t0}, {sW}\ns_lshl_b32 {t0}, {t0}, 6\ns_add_u32 {t0}, {t0}, {WS_STAMP}")
            a(f"s_memrealtime {sPC}\ns_waitcnt lgkmcnt(0)\nv_mov_b32 {u0}, {sPC[0]}\nbuffer_store_dword {u0}, {vL0}, {rWS}, {t0} offen offset:60")
            a(f"v_mov_b32 {u0}, {sRT[0]}\nbuffer_store_dword {u0}, {vL0}, {rWS}, {t0} offen offset:56")
            for k in range(self.ns): a(f"v_mov_b32 {u0}, {self.sST[2*k]}\nbuffer_store_dword {u0}, {vL0}, {rWS}, {t0} offen offset:{4*k}")
        a.label("END"); a("s_endpgm")
        a.label("CODE_END")
        return self

HEAD = open("recurrent_scan__spectral_gfnet__mixer_channel_mlp__prompt.s.ref").read().split("; Override")[0]
def emit(k, path):
    body = k.a.finalize()
    na = k.A.hi
    txt = HEAD + f"; @launch grid=(256,1,1) block=(256,1,1) lds={LDS_BYTES}\n" + f""".amdgcn_target "amdgcn-amd-amdhsa--gfx950"
.text
.set CODE_SPAN, CODE_END - {NAME} - 256
.globl {NAME}
.p2align 8
.type {NAME},@function
{NAME}:
{body}.section .rodata,"a"
.p2align 6
.amdhsa_kernel {NAME}
  .amdhsa_next_free_vgpr {256 + na}
  .amdhsa_next_free_sgpr 102
  .amdhsa_accum_offset 256
  .amdhsa_group_segment_fixed_size 0
  .amdhsa_kernarg_size 88
  .amdhsa_user_sgpr_count 2
  .amdhsa_user_sgpr_kernarg_segment_ptr 1
  .amdhsa_system_sgpr_workgroup_id_x 1
.end_amdhsa_kernel
"""
    open(path, "w").write(txt)
    print(path, "vgpr", k.V.hi, "agpr", na, "sgpr", k.S.hi, "nops", k.a.nops, "lines", body.count("\n"))

if __name__ == "__main__":
    emit(K(False).build(), "k_plain.s")
    k = K(True).build(); emit(k, "k_stamp.s")
    open("k_stamp.names", "w").write(" ".join(k.names))
```
